```python
import torch

def _softmax(x, axis=-1):
    return torch.softmax(x, dim=axis)
def _gelu(x):
    return torch.nn.functional.gelu(x, approximate="tanh")
def _silu(x):
    return torch.nn.functional.silu(x)
def _sigmoid(x):
    return torch.sigmoid(x)
def _layernorm(x, axis=-1, eps=1e-5):
    m = x.mean(dim=axis, keepdim=True)
    v = x.var(dim=axis, keepdim=True, unbiased=False)
    return (x - m) / torch.sqrt(v + eps)
def _scatter_add(tgt, idx, src, axis=0):
    return tgt.clone().index_add_(axis, idx, src)
def _segment_sum(src, seg, n):
    out = torch.zeros((n,) + src.shape[1:], dtype=src.dtype)
    return out.index_add_(0, seg, src)
def _pad(x, pw):
    flat = tuple(v for pair in reversed(pw) for v in pair)
    return torch.nn.functional.pad(x, flat)

kernel_name = 'standalone__convnext_block__vision'

def setup_inputs():

    _w = (lambda a: (lambda t: t.to(torch.bfloat16) if t.is_floating_point() else t)(torch.as_tensor(a)))
    H = W = 512
    C = 96
    return {
        "x": _w((lambda *s: torch.randn(*s, dtype=torch.bfloat16) * 0.05)(1, H, W, C)),
        "dw": _w((lambda *s: torch.randn(*s, dtype=torch.bfloat16) * 0.05)(7, 7, C)),
        "w1": _w((lambda *s: torch.randn(*s, dtype=torch.bfloat16) * 0.05)(C, 4 * C)),
        "w2": _w((lambda *s: torch.randn(*s, dtype=torch.bfloat16) * 0.05)(4 * C, C)),
    }

def reference(x, dw, w1, w2):
    B, H, W, C = x.shape
    pad = 3
    xp = _pad(x, ((0,0),(pad,pad),(pad,pad),(0,0)))
    out = torch.zeros_like(x)
    for i in range(7):
        for j in range(7):
            out = out + xp[:, i:i+H, j:j+W, :] * dw[i, j][None, None, None, :]
    h = _layernorm(out, axis=-1)
    return x + _gelu(h @ w1) @ w2
```

```python
import subprocess, sys, json
HEAD = '.amdgcn_target "amdgcn-amd-amdhsa--gfx950"\n.text\n'

def kernel(name, bodies, iters, pre="", nvgpr=128, accum=None, prio=None):
    if accum is None:
        accum = min(256, (nvgpr + 3) // 4 * 4)
    s = f""".globl {name}
.p2align 8
.type {name},@function
{name}:
    s_load_dwordx2 s[4:5], s[0:1], 0
    s_waitcnt lgkmcnt(0)
    s_mov_b32 s8, s4
    s_mov_b32 s9, s5
    s_mov_b32 s10, 0x100000
    s_mov_b32 s11, 0x00020000
    v_lshrrev_b32 v1, 6, v0
    s_nop 1
    v_readfirstlane_b32 s12, v1
    s_lshl_b32 s13, s2, 4
    s_add_u32 s13, s13, s12
    s_lshl_b32 s13, s13, 2
    v_and_b32 v2, 63, v0
    v_lshlrev_b32 v3, 4, v2
    s_mov_b32 s20, 0x3f000000
"""
    for i in range(4, min(nvgpr, 256)):
        if i < accum:
            s += f"    v_mov_b32 v{i}, 0.5\n"
    for i in range(accum, nvgpr):
        s += f"    v_accvgpr_write_b32 a{i-accum}, 0.5\n"
    s += pre + "\n"
    nr = len(bodies)
    s += f"    s_lshr_b32 s15, s12, 2\n    s_and_b32 s15, s15, {nr-1}\n"
    for r in range(1, nr):
        s += f"    s_cmp_eq_u32 s15, {r}\n    s_cbranch_scc1 R{r}_{name}\n"
    for r, body in enumerate(bodies):
        s += f"R{r}_{name}:\n"
        if prio: s += f"    s_setprio {prio[r]}\n"
        s += f"""    s_mov_b32 s14, {iters[r]}
    s_barrier
    s_memtime s[16:17]
    s_waitcnt lgkmcnt(0)
.p2align 6
L{r}_{name}:
{body}
    s_sub_u32 s14, s14, 1
    s_cmp_lg_u32 s14, 0
    s_cbranch_scc1 L{r}_{name}
    s_branch E_{name}
"""
    s += f"""E_{name}:
    s_waitcnt vmcnt(0) lgkmcnt(0)
    s_nop 15
    s_nop 15
    s_memtime s[18:19]
    s_waitcnt lgkmcnt(0)
    s_sub_u32 s18, s18, s16
    v_mov_b32 v1, s18
    v_mov_b32 v0, s13
    s_mov_b64 exec, 1
    buffer_store_dword v1, v0, s[8:11], 0 offen
    s_waitcnt vmcnt(0)
    s_endpgm
"""
    kd = f""".section .rodata,"a"
.p2align 6
.amdhsa_kernel {name}
  .amdhsa_next_free_vgpr {nvgpr}
  .amdhsa_next_free_sgpr 64
  .amdhsa_accum_offset {accum}
  .amdhsa_group_segment_fixed_size 0
  .amdhsa_kernarg_size 8
  .amdhsa_user_sgpr_count 2
  .amdhsa_user_sgpr_kernarg_segment_ptr 1
  .amdhsa_system_sgpr_workgroup_id_x 1
.end_amdhsa_kernel
.text
"""
    md = f"""  - .name: {name}
    .symbol: {name}.kd
    .kernarg_segment_size: 8
    .kernarg_segment_align: 8
    .group_segment_fixed_size: 0
    .private_segment_fixed_size: 0
    .wavefront_size: 64
    .sgpr_count: 64
    .vgpr_count: {nvgpr}
    .max_flat_workgroup_size: 1024
    .args:
      - {{.name: kernargs, .size: 8, .offset: 0, .value_kind: by_value}}
"""
    return s + kd, md

def build(tests, out):
    txt = HEAD; md = ""
    meta = []
    for t in tests:
        bodies = t["bodies"] if "bodies" in t else [t["body"]]
        iters = t.get("iters", 100)
        if isinstance(iters, int): iters = [iters] * len(bodies)
        s, m = kernel(t["name"], bodies, iters, t.get("pre", ""), t.get("nvgpr", 128), t.get("accum"), t.get("prio"))
        txt += s; md += m
        meta.append(dict(name=t["name"], n=t["n"], iters=iters, nroles=len(bodies), waves=t.get("waves", [1, 2, 4]), lds=t.get("lds", 0), desc=t.get("desc", "")))
    txt += "\n.amdgpu_metadata\n---\namdhsa.version: [1, 2]\namdhsa.kernels:\n" + md + "...\n.end_amdgpu_metadata\n"
    open(out + ".s", "w").write(txt)
    json.dump(meta, open(out + ".json", "w"))
    r = subprocess.run(["clang", "-x", "assembler", "-target", "amdgcn-amd-amdhsa", "-mcpu=gfx950", out + ".s", "-o", out + ".co"], capture_output=True, text=True)
    if r.returncode:
        print(r.stderr[:5000]); sys.exit(1)
    print("built", out)
```

```python
from mbgen2 import build
T = []
J = "\n".join
D = lambda i: 128 + 4 * (i % 16)
def exp(i): return f"    v_exp_f32 v{16+i%40}, v4"
def mf32(i):
    a = 64 + 16 * (i % 4)
    return f"    v_mfma_f32_32x32x16_bf16 v[{a}:{a+15}], v[8:11], v[12:15], v[{a}:{a+15}]"
pats = {
 "s8": "    v_lshlrev_b32 v7, 3, v2\n",
 "s16": "    v_lshlrev_b32 v7, 4, v2\n",
 "g128": "    v_and_b32 v7, 15, v2\n    v_lshlrev_b32 v7, 3, v7\n    v_lshrrev_b32 v6, 4, v2\n    v_lshlrev_b32 v6, 8, v6\n    v_add_u32 v7, v7, v6\n",
 "h256": "    v_and_b32 v7, 15, v2\n    v_lshlrev_b32 v7, 4, v7\n    v_lshrrev_b32 v6, 4, v2\n    v_lshlrev_b32 v6, 8, v6\n    v_add_u32 v7, v7, v6\n",
 "h256o": "    v_and_b32 v7, 15, v2\n    v_lshlrev_b32 v7, 4, v7\n    v_lshrrev_b32 v6, 4, v2\n    v_mul_u32_u24 v6, 264, v6\n    v_add_u32 v7, v7, v6\n",
}
for nm, pre in pats.items():
    b = [f"    ds_read2_b64 v[{D(i)}:{D(i)+3}], v7 offset0:{(i%4)*48} offset1:{(i%4)*48+24}" for i in range(64)]
    T.append(dict(name=f"{nm}_r2b64", body=J(b), n=64, desc=f"read2_b64 {nm} off +192", nvgpr=200, lds=32768, waves=[1], pre=pre))
    b = [f"    ds_read2_b64 v[{D(i)}:{D(i)+3}], v7 offset0:{(i%4)*48} offset1:{(i%4)*48+25}" for i in range(64)]
    T.append(dict(name=f"{nm}_r2b64_o", body=J(b), n=64, desc=f"read2_b64 {nm} off +200", nvgpr=200, lds=32768, waves=[1], pre=pre))
    b = [f"    ds_read_b64 v[{D(i)}:{D(i)+1}], v7 offset:{(i%4)*384}" for i in range(64)]
    T.append(dict(name=f"{nm}_b64", body=J(b), n=64, desc=f"read_b64 {nm}", nvgpr=200, lds=32768, waves=[1], pre=pre))
pre = pats["s8"]
b = [f"    ds_read2_b32 v[{D(i)}:{D(i)+1}], v7 offset0:{(i%4)*48} offset1:{(i%4)*48+1}" for i in range(64)]
T.append(dict(name=f"r2b32", body=J(b), n=64, desc=f"read2_b32 s8", nvgpr=200, lds=32768, waves=[1], pre=pre))
for k in (1, 2, 3):
    b = []
    for i in range(32):
        b.append(mf32(i))
        if i % 4 == 0:
            b += [f"    ds_read2_b64 v[{D(i+j)}:{D(i+j)+3}], v7 offset0:{0} offset1:{24}" for j in range(k)]
        b += [exp(3 * i + j) for j in range(3)]
    T.append(dict(name=f"iss_r2b64_{k}", body=J(b), n=8, desc=f"4x(mf32+3exp) + {k} read2_b64", nvgpr=200, lds=32768, waves=[1], pre=pre))
pre2 = pre + "    s_mov_b32 m0, 0\n"
for k in (1, 2):
    b = []
    for i in range(32):
        b.append(mf32(i))
        if i % 4 == 0:
            for j in range(k):
                b += [f"    buffer_load_dwordx4 v3, s[8:11], 0 offen offset:{1024*j} lds"]
        b += [exp(3 * i + j) for j in range(3)]
    b.append("    s_waitcnt vmcnt(8)")
    T.append(dict(name=f"iss_dma_{k}", body=J(b), n=8, desc=f"4x(mf32+3exp) + {k} dma", nvgpr=200, lds=32768, waves=[1], pre=pre2))
b = []
for i in range(32):
    b.append(mf32(i))
    if i % 4 == 0:
        b += [f"    buffer_store_dwordx4 v[8:11], v3, s[8:11], 0 offen offset:2048"]
    b += [exp(3 * i + j) for j in range(3)]
b.append("    s_waitcnt vmcnt(8)")
T.append(dict(name=f"iss_st", body=J(b), n=8, desc=f"4x(mf32+3exp) + 1 store x4", nvgpr=200, lds=32768, waves=[1], pre=pre2))
b = []
for i in range(32):
    b.append(mf32(i))
    if i % 4 == 0:
        b += [f"    s_barrier"]
    b += [exp(3 * i + j) for j in range(3)]
T.append(dict(name=f"iss_bar", body=J(b), n=8, desc=f"4x(mf32+3exp) + 1 barrier", nvgpr=200, lds=32768, waves=[1], pre=pre2))
b = []
for i in range(32):
    b.append(mf32(i))
    b += [exp(3 * i + j) for j in range(3)]
T.append(dict(name=f"iss_none", body=J(b), n=8, desc=f"4x(mf32+3exp)", nvgpr=200, lds=32768, waves=[1], pre=pre2))
build(T, "t7")
```

```python
from mbgen2 import build
import subprocess, shutil
T = []
J = "\n".join
pre = ["    v_mov_b32 v4, 0x9e3779b1", "    s_mov_b32 s30, 0x81ffffff", "    s_mov_b32 s31, 0x3e000000", "    s_mov_b32 s32, 0x8fff8fff", "    s_mov_b32 s33, 0x30003000",
       "    s_mov_b32 s34, 0x3f123456", "    s_mov_b32 s35, 0x3f123456", "    s_mov_b32 s36, 0x81ff81ff", "    s_mov_b32 s37, 0x3c003c00", "    s_mov_b32 s38, 0x3a123a12", "    v_add_u32 v5, 12345, v0"]
for r in range(8, 200):
    m, o = ("s30", "s31") if r < 72 else ("s36", "s37") if r < 136 else ("s32", "s33")
    pre += [f"    v_mul_lo_u32 v5, v5, v4", f"    v_lshrrev_b32 v6, 15, v5", "    v_xor_b32 v5, v5, v6", f"    v_add_u32 v5, {r}, v5",
            f"    v_and_b32 v6, {m}, v5", f"    v_or_b32 v{r}, {o}, v6"]
pre = J(pre)
K = dict(n=1, iters=100, waves=[1], nvgpr=256, pre=pre, lds=32768, desc="")
P = lambda i: f"v[{8+2*(i%32)}:{9+2*(i%32)}]"
D2 = lambda i: f"v[{200+2*(i%20)}:{201+2*(i%20)}]"
F = lambda i: f"v{8+i%64}"
H = lambda i: f"v{136+i%64}"
D = lambda i: f"v{200+i%40}"
def add(nm, f, n): T.append(dict(name=nm, body=J("    " + f(i) for i in range(n)), **K))
add("pk_yya", lambda i: f"v_pk_fma_f32 {D2(i)}, {P(i)}, {P(i)}, s[34:35]", 256)
add("pk_ekk", lambda i: f"v_pk_fma_f32 {D2(i)}, {P(i)}, s[34:35], s[34:35]", 256)
add("pk_mul", lambda i: f"v_pk_mul_f32 {D2(i)}, {P(i)}, {P(i+7)}", 256)
add("pk_add", lambda i: f"v_pk_add_f32 {D2(i)}, {P(i)}, s[34:35]", 256)
add("h_yya", lambda i: f"v_pk_fma_f16 {D(i)}, {H(i)}, {H(i)}, s38", 256)
add("h_mul", lambda i: f"v_pk_mul_f16 {D(i)}, {H(i)}, {H(i+7)}", 256)
add("exp32", lambda i: f"v_exp_f32 {D(i)}, {F(i)}", 128)
add("rcp32", lambda i: f"v_rcp_f32 {D(i)}, {F(i)}", 128)
add("exp16", lambda i: f"v_exp_f16 {D(i)}, {H(i)}", 128)
add("rcp16", lambda i: f"v_rcp_f16 {D(i)}, {H(i)}", 128)
add("cvtbf", lambda i: f"v_cvt_pk_bf16_f32 {D(i)}, {F(i)}, {F(i+1)}", 256)
add("cvth", lambda i: f"v_cvt_pk_f16_f32 {D(i)}, {F(i)}, {F(i+1)}", 256)
add("dot2", lambda i: f"v_dot2_f32_bf16 {D(i)}, v{72+i%64}, s37, {F(i)}", 256)
add("mov0", lambda i: f"v_pk_mov_b32 {D2(i)}, 0, 0", 256)
def ch(op, base):
    def f(i):
        a = 200 + 16 * ((i // 6) % 3)
        A = base + 4 * ((i * 5) % 10); B = base + 40 + 4 * (i % 6)
        return f"{op} v[{a}:{a+15}], v[{A}:{A+3}], v[{B}:{B+3}], " + ("0" if i % 6 == 0 else f"v[{a}:{a+15}]")
    return f
add("mfbf", ch("v_mfma_f32_32x32x16_bf16", 72), 36)
add("mfh", ch("v_mfma_f32_32x32x16_f16", 136), 36)
build(T, "t17")
s = open("t17.s").read().replace("s_memtime", "s_memrealtime")
open("t17r.s", "w").write(s)
subprocess.check_call(["clang", "-x", "assembler", "-target", "amdgcn-amd-amdhsa", "-mcpu=gfx950", "t17r.s", "-o", "t17r.co"])
shutil.copy("t17.json", "t17r.json")
```

```python
from mbgen2 import build
import subprocess, shutil
T = []
J = "\n".join
pre = ["    v_mov_b32 v4, 0x9e3779b1", "    s_mov_b32 s30, 0x81ff81ff", "    s_mov_b32 s31, 0x3c003c00", "    v_add_u32 v5, 12345, v0", "    s_mov_b32 s32, 0xffff"]
for r in range(8, 200):
    pre += [f"    v_mul_lo_u32 v5, v5, v4", f"    v_lshrrev_b32 v6, 15, v5", "    v_xor_b32 v5, v5, v6", f"    v_add_u32 v5, {r}, v5",
            f"    v_and_b32 v6, s30, v5", f"    v_or_b32 v{r}, s31, v6"]
for i in range(32):
    pre += [f"    ds_write_b128 v3, v[{8+4*i}:{11+4*i}] offset:{1024*i}"]
for r in range(8, 40): pre += [f"    v_and_b32 v{r}, s32, v{r}"]
pre += ["    s_waitcnt lgkmcnt(0)", "    v_lshlrev_b32 v7, 3, v2", "    v_lshlrev_b32 v6, 2, v2", "    v_and_b32 v5, 3, v2", "    v_mul_u32_u24 v5, 0x5555, v5", "    v_mov_b32 v4, 0"]
pre = J(pre)
K = dict(n=1, iters=100, waves=[1], nvgpr=256, pre=pre, lds=65536, desc="")
def mf(i):
    a = 200 + 16 * ((i // 6) % 2)
    A = 72 + 4 * ((i * 5) % 10); B = 120 + 4 * (i % 6)
    return f"    v_mfma_f32_32x32x16_bf16 v[{a}:{a+15}], v[{A}:{A+3}], v[{B}:{B+3}], " + ("0" if i % 6 == 0 else f"v[{a}:{a+15}]")
D = lambda i: 232 + 4 * (i % 6)
ops = {
 "none": lambda i: [],
 "b128": lambda i: [f"    ds_read_b128 v[{D(i)}:{D(i)+3}], v3 offset:{1024*(i%32)}"],
 "r2b64": lambda i: [f"    ds_read2_b64 v[{D(i)}:{D(i)+3}], v7 offset0:{(i%3)*64} offset1:{(i%3)*64+64+((i//3)%2)}"],
 "b64x2": lambda i: [f"    ds_read_b64 v[{D(i)}:{D(i)+1}], v7 offset:{1024*(i%32)}", f"    ds_read_b64 v[{D(i)+2}:{D(i)+3}], v7 offset:{1024*(i%32)+512}"],
 "r2b32x2": lambda i: [f"    ds_read2_b32 v[{D(i)}:{D(i)+1}], v6 offset0:{(i%3)*64} offset1:{(i%3)*64+64}", f"    ds_read2_b32 v[{D(i)+2}:{D(i)+3}], v6 offset0:{(i%3)*64+1} offset1:{(i%3)*64+65}"],
 "zero128": lambda i: [f"    ds_read_b128 v[{D(i)}:{D(i)+3}], v4 offset:40000"],
 "exp3": lambda i: [f"    v_exp_f32 v{D(i)+j}, v{144+(3*i+j)%50}" for j in range(3)],
 "cvt6": lambda i: [f"    v_cvt_pk_bf16_f32 v{D(i)+j%4}, v{144+(6*i+j)%50}, v{145+(6*i+j)%50}" for j in range(6)],
}
for nm, f in ops.items():
    b = []
    for i in range(36): b += [mf(i)] + f(i)
    T.append(dict(name=nm, body=J(b), **K))
def sm(i, A0):
    a = 232 + 4 * (i % 6); A = A0 + 4 * (i % 8); B = 120 + 4 * (i % 10)
    return f"    v_smfmac_f32_16x16x64_bf16 v[{a}:{a+3}], v[{A}:{A+3}], v[{B}:{B+7}], v5"
T.append(dict(name="sm_half", body=J(sm(i, 8) for i in range(72)), **K))
T.append(dict(name="sm_full", body=J(sm(i, 72) for i in range(72)), **K))
build(T, "t18")
s = open("t18.s").read().replace("s_memtime", "s_memrealtime")
open("t18r.s", "w").write(s)
subprocess.check_call(["clang", "-x", "assembler", "-target", "amdgcn-amd-amdhsa", "-mcpu=gfx950", "t18r.s", "-o", "t18r.co"])
shutil.copy("t18.json", "t18r.json")
```
